```python
import torch

def _softmax(x, axis=-1):
    return torch.softmax(x, dim=axis)
def _gelu(x):
    return torch.nn.functional.gelu(x, approximate="tanh")
def _silu(x):
    return torch.nn.functional.silu(x)
def _sigmoid(x):
    return torch.sigmoid(x)
def _layernorm(x, axis=-1, eps=1e-5):
    m = x.mean(dim=axis, keepdim=True)
    v = x.var(dim=axis, keepdim=True, unbiased=False)
    return (x - m) / torch.sqrt(v + eps)
def _scatter_add(tgt, idx, src, axis=0):
    return tgt.clone().index_add_(axis, idx, src)
def _segment_sum(src, seg, n):
    out = torch.zeros((n,) + src.shape[1:], dtype=src.dtype)
    return out.index_add_(0, seg, src)
def _pad(x, pw):
    flat = tuple(v for pair in reversed(pw) for v in pair)
    return torch.nn.functional.pad(x, flat)

kernel_name = 'sequential_preLN__softmax_full_mha__dense_activation_silu__prompt'

def setup_inputs():

    _w = (lambda a: (lambda t: t.to(torch.bfloat16) if t.is_floating_point() else t)(torch.as_tensor(a)))
    def _A_setup():
        B, S, D = 1, 2048, 448
        return {
            "x": _w((lambda *s: torch.randn(*s, dtype=torch.bfloat16) * 0.05)(B, S, D)),
            "wqkv": _w((lambda *s: torch.randn(*s, dtype=torch.bfloat16) * 0.05)(D, 3 * D)),
            "wo": _w((lambda *s: torch.randn(*s, dtype=torch.bfloat16) * 0.05)(D, D)),
        }
    _A_in = _A_setup()

    def _B_setup():
        B, S, D, F = 1, 2048, 448, 1792
        return {
            "x": _w((lambda *s: torch.randn(*s, dtype=torch.bfloat16) * 0.05)(B, S, D)),
            "w1": _w((lambda *s: torch.randn(*s, dtype=torch.bfloat16) * 0.8)(D, F) * (D ** -0.5)),
            "w2": _w((lambda *s: torch.randn(*s, dtype=torch.bfloat16) * 0.2)(F, D) * (F ** -0.5)),
        }
    _B_in = _B_setup()

    return {
        "A_x": _A_in["x"],
        "A_wqkv": _A_in["wqkv"],
        "A_wo": _A_in["wo"],
        "B_x": _B_in["x"],
        "B_w1": _B_in["w1"],
        "B_w2": _B_in["w2"],
    }

def reference(A_x, A_wqkv, A_wo, B_x, B_w1, B_w2):
    def _A_ref(x, wqkv, wo):
        B, S, D = x.shape
        H = 16; Dh = D // H
        qkv = (lambda x, *d: x.permute(*d))((x @ wqkv).reshape(B, S, 3, H, Dh), 2, 0, 3, 1, 4)
        q, k, v = qkv[0], qkv[1], qkv[2]
        scale = Dh ** -0.5
        scores = torch.einsum("bhqd,bhkd->bhqk", q, k) * scale
        p = _softmax(scores, axis=-1)
        o = torch.einsum("bhqk,bhkd->bhqd", p, v)
        return (lambda x, *d: x.permute(*d))(o, 0, 2, 1, 3).reshape(B, S, D) @ wo

    def _B_ref(x, w1, w2):
        h = torch.einsum("bsd,df->bsf", x, w1)
        h = _silu(h)
        out = torch.einsum("bsf,fd->bsd", h, w2)
        return out

    x = A_x
    h = x + _A_ref(_layernorm(x, axis=-1), A_wqkv, A_wo)
    h2 = h + _B_ref(_layernorm(h, axis=-1), B_w1, B_w2)
    return h2
```

```python
import sys
def kernel(name, body, iters=200, vg=256, pre=""):
    return f"""
.text
.globl {name}
.p2align 8
.type {name},@function
{name}:
  s_load_dwordx2 s[4:5], s[0:1], 0
  s_load_dwordx2 s[6:7], s[0:1], 8
  v_lshrrev_b32 v1, 6, v0
  s_nop 1
  v_readfirstlane_b32 s3, v1
  s_waitcnt lgkmcnt(0)
  s_mov_b32 s8, s4
  s_mov_b32 s9, s5
  s_mov_b32 s10, 0x4000000
  s_mov_b32 s11, 0x20000
  s_mov_b32 s12, s6
  s_mov_b32 s13, s7
  s_mov_b32 s14, 0x4000000
  s_mov_b32 s15, 0x20000
{pre}
  s_barrier
  s_memtime s[20:21]
  s_waitcnt lgkmcnt(0)
  s_mov_b32 s16, {iters}
L_{name}:
{body}
  s_sub_u32 s16, s16, 1
  s_cmp_lg_u32 s16, 0
  s_cbranch_scc1 L_{name}
  s_nop 15
  s_nop 15
  s_memtime s[22:23]
  s_waitcnt lgkmcnt(0)
  s_sub_u32 s22, s22, s20
  s_lshl_b32 s17, s2, BLKSHIFT
  s_add_u32 s17, s17, s3
  s_lshl_b32 s17, s17, 2
  v_mov_b32 v2, s22
  v_mov_b32 v3, s17
  buffer_store_dword v2, v3, s[8:11], 0 offen
  s_endpgm
.section .rodata,"a"
.p2align 6
.amdhsa_kernel {name}
  .amdhsa_next_free_vgpr {vg}
  .amdhsa_next_free_sgpr 102
  .amdhsa_accum_offset {min(vg,256)}
  .amdhsa_group_segment_fixed_size 0
  .amdhsa_kernarg_size 16
  .amdhsa_user_sgpr_count 2
  .amdhsa_user_sgpr_kernarg_segment_ptr 1
  .amdhsa_system_sgpr_workgroup_id_x 1
.end_amdhsa_kernel
"""
def meta(names):
    s=".amdgpu_metadata\n---\namdhsa.version: [1, 2]\namdhsa.kernels:\n"
    for n in names:
        s+=f"""  - .name: {n}
    .symbol: {n}.kd
    .kernarg_segment_size: 16
    .kernarg_segment_align: 8
    .group_segment_fixed_size: 0
    .private_segment_fixed_size: 0
    .wavefront_size: 64
    .sgpr_count: 102
    .vgpr_count: 128
    .max_flat_workgroup_size: 1024
    .args:
      - {{.name: kernargs, .size: 16, .offset: 0, .value_kind: by_value}}
"""
    s+="...\n.end_amdgpu_metadata\n"
    return s
```

```python
from genmb import meta
def kernel(name, nwaves, setup, loads, vg=256):
    sh = {4:2, 8:3, 16:4, 2:1, 1:0}[nwaves]
    return f"""
.text
.globl {name}
.p2align 8
.type {name},@function
{name}:
  s_memtime s[20:21]
  s_load_dwordx2 s[4:5], s[0:1], 0
  s_load_dwordx2 s[6:7], s[0:1], 8
  v_lshrrev_b32 v1, 6, v0
  v_and_b32 v2, 63, v0
  v_readfirstlane_b32 s3, v1
  s_waitcnt lgkmcnt(0)
  s_mov_b32 s8, s4
  s_mov_b32 s9, s5
  s_mov_b32 s10, 0x4000000
  s_mov_b32 s11, 0x20000
  s_mov_b32 s12, s6
  s_mov_b32 s13, s7
  s_mov_b32 s14, 0x4000000
  s_mov_b32 s15, 0x20000
{setup}
{loads}
  s_waitcnt vmcnt(0)
  s_memtime s[22:23]
  s_waitcnt lgkmcnt(0)
  s_sub_u32 s22, s22, s20
  s_lshl_b32 s17, s2, {sh}
  s_add_u32 s17, s17, s3
  s_lshl_b32 s17, s17, 2
  v_mov_b32 v2, s22
  v_mov_b32 v3, s17
  buffer_store_dword v2, v3, s[8:11], 0 offen
  s_endpgm
.section .rodata,"a"
.p2align 6
.amdhsa_kernel {name}
  .amdhsa_next_free_vgpr {vg}
  .amdhsa_next_free_sgpr 102
  .amdhsa_accum_offset {min(vg,256)}
  .amdhsa_group_segment_fixed_size 0
  .amdhsa_kernarg_size 16
  .amdhsa_user_sgpr_count 2
  .amdhsa_user_sgpr_kernarg_segment_ptr 1
  .amdhsa_system_sgpr_workgroup_id_x 1
.end_amdhsa_kernel
"""
out = '.amdgcn_target "amdgcn-amd-amdhsa--gfx950"\n'
names = []; cmd = []
def add(name, nwaves, setup, loads, lds=0, vg=256, grid=256):
    global out
    out += kernel(name, nwaves, setup, loads, vg)
    names.append(name); cmd.append(f"{name} {grid} {nwaves*64} {lds}")
def regsel(R, KB, nwaves):
    return f"""
  s_lshr_b32 s24, s2, 3
  s_and_b32 s24, s24, {R-1}
  s_mul_i32 s24, s24, {KB*1024}
  s_mul_i32 s25, s3, {KB*1024//nwaves}
  s_add_u32 s24, s24, s25
"""
def lin(n, dma=False, nreg=56, ldsbase=None):
    L = []
    for i in range(n):
        if i % 4 == 0 and i:
            L.append("  s_add_u32 s24, s24, 4096")
        if dma:
            if i % 4 == 0:
                L.append(f"  s_add_u32 s26, s27, {(i%32)*1024}")
                L.append("  s_mov_b32 m0, s26")
                L.append("  s_nop 0")
            L.append(f"  buffer_load_dwordx4 v4, s[12:15], s24 offen offset:{1024*(i%4)} lds")
        else:
            L.append(f"  buffer_load_dwordx4 v[{16+4*(i%nreg)}:{19+4*(i%nreg)}], v4, s[12:15], s24 offen offset:{1024*(i%4)}")
    return "\n".join(L)
for R in (1, 8, 32):
    for KB in (224,):
        for nw in (4, 8, 16):
            n = KB // nw
            vg = 256 if nw == 4 else (256 if nw == 8 else 128)
            add(f"lin_R{R}_K{KB}_w{nw}", nw, regsel(R, KB, nw) + "  v_lshlrev_b32 v4, 4, v2\n", lin(n, nreg=min(56, (vg-16)//4)), vg=vg)
        nw = 4; n = KB // nw
        add(f"dma_R{R}_K{KB}_w{nw}", nw, regsel(R, KB, nw) + "  v_lshlrev_b32 v4, 4, v2\n  s_lshl_b32 s27, s3, 15\n", lin(n, dma=True), lds=131072)
    def r32():
        L = []
        for g in range(2):
            for ks in range(28):
                L.append(f"  buffer_load_dwordx4 v[{16+4*(g*28+ks)}:{19+4*(g*28+ks)}], v4, s[12:15], s24 offen offset:{32*ks}")
            L.append("  s_add_u32 s24, s24, 28672")
        return "\n".join(L)
    add(f"r32_R{R}_K224_w4", 4, regsel(R, 224, 4) + "  v_and_b32 v5, 31, v2\n  v_mul_u32_u24 v4, 896, v5\n  v_lshrrev_b32 v5, 5, v2\n  v_lshl_add_u32 v4, v5, 4, v4\n", r32())
    def r8():
        L = []
        i = 0
        for g in range(8):
            for c in range(7):
                L.append(f"  buffer_load_dwordx4 v[{16+4*i}:{19+4*i}], v4, s[12:15], s24 offen offset:{128*c}")
                i += 1
            L.append("  s_add_u32 s24, s24, 7168")
        return "\n".join(L)
    add(f"r8_R{R}_K224_w4", 4, regsel(R, 224, 4) + "  v_lshrrev_b32 v5, 3, v2\n  v_mul_u32_u24 v4, 896, v5\n  v_and_b32 v5, 7, v2\n  v_lshl_add_u32 v4, v5, 4, v4\n", r8())
for KB in (32, 64, 128):
    add(f"lin_R8_K{KB}_w4", 4, regsel(8, KB, 4) + "  v_lshlrev_b32 v4, 4, v2\n", lin(KB//4))
out += meta(names)
open("mb2.s", "w").write(out)
open("mb2.cmd", "w").write(" ".join(cmd))
```

```python
from genmb import meta
from mb2 import kernel, regsel
out = '.amdgcn_target "amdgcn-amd-amdhsa--gfx950"\n'
names = []; cmd = []
def add(name, nwaves, setup, loads, lds=0, vg=256, grid=256):
    global out
    out += kernel(name, nwaves, setup, loads, vg)
    names.append(name); cmd.append(f"{name} {grid} {nwaves*64} {lds}")
def linrot(n, G):
    L = []
    for i in range(n):
        if i % G == 0:
            if i:
                L.append(f"  s_add_u32 s28, s28, {G*1024}")
                L.append(f"  s_cmp_ge_u32 s28, {n*1024}")
                L.append(f"  s_cselect_b32 s29, {n*1024}, 0")
                L.append(f"  s_sub_u32 s28, s28, s29")
            L.append("  s_add_u32 s30, s24, s28")
        L.append(f"  buffer_load_dwordx4 v[{16+4*i}:{19+4*i}], v4, s[12:15], s30 offen offset:{1024*(i%G)}")
    return "\n".join(L)
for R in (1, 8):
    nshare = 32 // R
    for G in (1, 2, 4):
        setup = regsel(R, 224, 4) + f"""  v_lshlrev_b32 v4, 4, v2
  s_lshr_b32 s28, s2, 3
  s_lshr_b32 s28, s28, {R.bit_length()-1}
  s_mul_i32 s28, s28, 56
  s_lshr_b32 s28, s28, {nshare.bit_length()-1}
  s_and_b32 s28, s28, {~(G-1) & 0xffff}
  s_lshl_b32 s28, s28, 10
"""
        add(f"rot_R{R}_G{G}", 4, setup, linrot(56, G))
out += meta(names)
open("mb4.s", "w").write(out)
open("mb4.cmd", "w").write(" ".join(cmd))
```

```python
NAME = "sequential_preLN__softmax_full_mha__dense_activation_silu__prompt"
QF_OFF  = 0x000000
KVF_OFF = 0x200000
FL_OFF  = 0x600000
OF_OFF  = 0x700000
WOF_OFF = 0x900000
W1F_OFF = 0xA00000
W2F_OFF = 0xC00000
HF_OFF  = 0xE00000
ST_OFF  = 0xFC0000
H1F_OFF = 0x1000000
WS_SIZE = 0x2000000
import os
WSB = int(os.environ.get("WSB", "0")) << 20
QF_OFF += WSB; KVF_OFF += WSB; FL_OFF += WSB; OF_OFF += WSB; HF_OFF += WSB; ST_OFF += WSB; H1F_OFF += WSB; WS_SIZE += WSB

class A:
    def __init__(s):
        s.L = []
    def __call__(s, t):
        for l in t.strip("\n").split("\n"):
            s.L.append("  " + l.strip())
    def lab(s, l):
        s.L.append(l + ":")
    def c(s, t):
        s.L.append("  ; " + t)
    def text(s):
        return "\n".join(s.L) + "\n"

def vr(b, n):
    return f"v[{b}:{b+n-1}]" if n > 1 else f"v{b}"
def sr(b, n):
    return f"s[{b}:{b+n-1}]" if n > 1 else f"s{b}"

def srd(a, d, base, size):
    a(f"s_mov_b32 s{d}, s{base}")
    a(f"s_mov_b32 s{d+1}, s{base+1}")
    a(f"s_mov_b32 s{d+2}, 0x{size:x}")
    a(f"s_mov_b32 s{d+3}, 0x00020000")

def khead(a, name):
    a.L.append(".text")
    a.L.append(f".globl {name}")
    a.L.append(".p2align 8")
    a.L.append(f".type {name},@function")
    a.lab(name)

def kdesc(name, vgpr, sgpr=102, agpr=0):
    acc = (vgpr + 3) // 4 * 4
    nfv = acc + agpr if agpr else vgpr
    return f""".section .rodata,"a"
.p2align 6
.amdhsa_kernel {name}
  .amdhsa_next_free_vgpr {nfv}
  .amdhsa_next_free_sgpr {sgpr}
  .amdhsa_accum_offset {acc}
  .amdhsa_group_segment_fixed_size 0
  .amdhsa_kernarg_size 72
  .amdhsa_user_sgpr_count 2
  .amdhsa_user_sgpr_kernarg_segment_ptr 1
  .amdhsa_system_sgpr_workgroup_id_x 1
.end_amdhsa_kernel
"""

def xhalf_add(a, v, t, op="v_add_f32"):
    a(f"v_mov_b32 v{t}, v{v}")
    a("s_nop 1")
    a(f"v_permlane32_swap_b32 v{t}, v{v}")
    a("s_nop 1")
    a(f"{op} v{v}, v{v}, v{t}")

def round_bf16(a, v, t):
    a(f"v_cvt_pk_bf16_f32 v{t}, v{v}, v{v}")
    a(f"v_lshlrev_b32 v{v}, 16, v{t}")

import os
PROF = os.environ.get("PROF", "0") == "1"
PROF_OFF = 0x1800000
class Prof:
    def __init__(s, a, kidx, wsh=2):
        s.a = a; s.k = kidx; s.n = 0; s.wsh = wsh
    def start(s):
        if not PROF: return
        s.a("s_memrealtime s[80:81]")
        for i in range(16): s.a(f"s_mov_b32 s{64+i}, 0")
        s.stamp()
    def stamp(s):
        if not PROF: return
        i = s.n; s.n += 1
        assert i < 16
        s.a(f"s_memtime s[90:91]")
        s.a("s_waitcnt lgkmcnt(0)")
        s.a(f"s_mov_b32 s{64+i}, s90")
    def end(s, wsbase):
        if not PROF: return
        a = s.a
        s.n = 15
        s.stamp()
        a("s_memrealtime s[82:83]")
        a("s_waitcnt lgkmcnt(0)")
        a(f"s_mov_b32 s84, s{wsbase}")
        a(f"s_mov_b32 s85, s{wsbase+1}")
        a(f"s_mov_b32 s86, 0x{WS_SIZE:x}")
        a("s_mov_b32 s87, 0x00020000")
        a(f"s_lshl_b32 s88, s2, {s.wsh}")
        a("s_add_u32 s88, s88, s3")
        a("s_lshl_b32 s88, s88, 7")
        a(f"s_add_u32 s88, s88, 0x{PROF_OFF + s.k*0x40000:x}")
        a("v_mov_b32 v0, 0")
        for i in range(16):
            a(f"v_mov_b32 v1, s{64+i}")
            a(f"buffer_store_dword v1, v0, s[84:87], s88 offen offset:{4*i}")
            a("s_nop 1")
        for i in range(2):
            a(f"v_mov_b32 v1, s{80+2*i}")
            a(f"buffer_store_dword v1, v0, s[84:87], s88 offen offset:{64+4*i}")
            a("s_nop 1")
        a("s_getreg_b32 s89, hwreg(HW_REG_XCC_ID)")
        a("v_mov_b32 v1, s89")
        a(f"buffer_store_dword v1, v0, s[84:87], s88 offen offset:{72}")
        a("s_getreg_b32 s89, hwreg(HW_REG_HW_ID)")
        a("v_mov_b32 v1, s89")
        a(f"buffer_store_dword v1, v0, s[84:87], s88 offen offset:{76}")
```

```python
import sys, importlib
sys.path.insert(0, "gen")
from common import *
HEADER = open("cdna_kernels/" + NAME + ".s.ref").read().split("; Override launch")[0]
def build(mods, path):
    texts, descs, launches = [], [], []
    for m, f in mods:
        mod = importlib.import_module(m)
        t, d, l = getattr(mod, f)()
        texts.append(t); descs.append(d); launches.append(l)
    s = HEADER
    for (n, g, b, lds) in launches:
        s += f"; @launch kernel={n} grid=({g},1,1) block=({b},1,1) lds={lds}\n"
    s += '.amdgcn_target "amdgcn-amd-amdhsa--gfx950"\n'
    s += "".join(texts) + "".join(descs)
    open(path, "w").write(s)
if __name__ == "__main__":
    allm = [("k1", "gen_k1"), ("k2", "gen_k2"), ("k3", "gen_k3"), ("k4", "gen_k4"), ("k5", "gen_k5")]
    sel = sys.argv[1] if len(sys.argv) > 1 else "one"
    out = sys.argv[2] if len(sys.argv) > 2 else "cdna_kernels/" + NAME + ".s"
    if sel.isdigit(): mods = allm[:int(sel)]
    else: mods = [(m, "gen_" + m) for m in sel.split(",")]
    build(mods, out)
```
